```python
import torch

def _softmax(x, axis=-1):
    return torch.softmax(x, dim=axis)
def _gelu(x):
    return torch.nn.functional.gelu(x, approximate="tanh")
def _silu(x):
    return torch.nn.functional.silu(x)
def _sigmoid(x):
    return torch.sigmoid(x)
def _layernorm(x, axis=-1, eps=1e-5):
    m = x.mean(dim=axis, keepdim=True)
    v = x.var(dim=axis, keepdim=True, unbiased=False)
    return (x - m) / torch.sqrt(v + eps)
def _scatter_add(tgt, idx, src, axis=0):
    return tgt.clone().index_add_(axis, idx, src)
def _segment_sum(src, seg, n):
    out = torch.zeros((n,) + src.shape[1:], dtype=src.dtype)
    return out.index_add_(0, seg, src)
def _pad(x, pw):
    flat = tuple(v for pair in reversed(pw) for v in pair)
    return torch.nn.functional.pad(x, flat)

kernel_name = 'standalone__layernorm_linear__sampling'

def setup_inputs():

    _w = (lambda a: (lambda t: t.to(torch.bfloat16) if t.is_floating_point() else t)(torch.as_tensor(a)))
    B, S, D = 1024, 8, 640
    return {
        "x": _w((lambda *s: torch.randn(*s, dtype=torch.bfloat16) * 0.05)(B, S, D)),
        "g": _w((lambda *s: torch.randn(*s, dtype=torch.bfloat16) * 0.05)(D) + 1.0),
        "b": _w((lambda *s: torch.randn(*s, dtype=torch.bfloat16) * 0.4)(D)),
        "w": _w((lambda *s: torch.randn(*s, dtype=torch.bfloat16) * 0.05)(D, D)),
    }

def reference(x, g, b, w):
    return (_layernorm(x, axis=-1) * g + b) @ w
```

```python
import sys

A_STRIDE = 1296
A_BYTES = 64 * A_STRIDE
NSLOT = 3
B_SLOT = 5120
LDS_BYTES = A_BYTES + 4 * NSLOT * B_SLOT
NSTEP = 20

out = []
def e(s):
    out.append("    " + s)

XR = 20
GU = 100
BU = 140
DD = 180
TM = 220
VW = 240
VTR = 245
VXA = 246
VOUT = 247
WF = 20
XF = 60

e("s_cmp_ge_u32 s2, 256")
e("s_cbranch_scc1 L_end")
e("s_load_dwordx4 s[4:7], s[0:1], 0")
e("s_load_dwordx4 s[8:11], s[0:1], 16")
e("s_load_dwordx2 s[12:13], s[0:1], 32")
e("v_lshrrev_b32 v2, 6, v0")
e("v_and_b32 v1, 63, v0")
e("s_lshr_b32 s3, s2, 4")
e("s_lshl_b32 s3, s3, 3")
e("s_and_b32 s14, s2, 7")
e("s_add_u32 s3, s3, s14")
e("s_lshl_b32 s36, s3, 6")
e("s_lshr_b32 s14, s2, 3")
e("s_and_b32 s14, s14, 1")
e("s_mul_i32 s37, s14, 320")
e("v_readfirstlane_b32 s38, v2")
e("s_nop 3")
e("s_mul_i32 s39, s38, 80")
e("s_add_u32 s39, s39, s37")
e("s_waitcnt lgkmcnt(0)")
def srd(d, p, n):
    e(f"s_mov_b32 s{d}, s{p}")
    e(f"s_and_b32 s{d+1}, s{p+1}, 0xffff")
    e(f"s_mov_b32 s{d+2}, {n}")
    e(f"s_mov_b32 s{d+3}, 0x20000")
srd(16, 4, 10485760)
srd(20, 6, 1280)
srd(24, 8, 1280)
srd(28, 10, 819200)
srd(32, 12, 10485760)

e("s_mov_b32 s14, 6554")
for q in range(5):
    e(f"v_add_u32 v3, {q*64}, v1")
    e("v_mul_lo_u32 v4, v3, s14")
    e("v_lshrrev_b32 v4, 16, v4")
    e("v_mul_u32_u24 v5, 10, v4")
    e("v_sub_u32 v5, v3, v5")
    e("v_and_b32 v6, 15, v4")
    e("v_lshrrev_b32 v6, 2, v6")
    e("v_lshlrev_b32 v6, 3, v6")
    e("v_and_b32 v7, 3, v4")
    e("v_add_u32 v6, v6, v7")
    e("v_lshrrev_b32 v7, 4, v4")
    e("v_lshlrev_b32 v7, 2, v7")
    e("v_add_u32 v6, v6, v7")
    e("v_mul_u32_u24 v6, 0x500, v6")
    e("v_lshlrev_b32 v5, 4, v5")
    e("v_add_u32 v6, v6, v5")
    e("s_lshl_b32 s15, s39, 1")
    e(f"v_add_u32 v{VW+q}, s15, v6")
e(f"s_mul_i32 s42, s38, {NSLOT*B_SLOT}")
e(f"s_add_u32 s42, s42, {A_BYTES}")

def dma_stage(t):
    slot = t % NSLOT
    e(f"s_mov_b32 s41, {t*40960}")
    for q in range(5):
        e(f"s_add_u32 s43, s42, {slot*B_SLOT + q*1024}")
        e("s_mov_b32 m0, s43")
        e("s_nop 0")
        e(f"buffer_load_dwordx4 v{VW+q}, s[28:31], s41 offen lds")

dma_stage(0)
dma_stage(1)

e("v_lshrrev_b32 v3, 4, v1")
e("v_and_b32 v4, 15, v1")
e("s_lshl_b32 s14, s38, 4")
e("s_add_u32 s14, s14, s36")
e("v_add_u32 v5, s14, v3")
e("s_mov_b32 s15, 1280")
e("v_mul_lo_u32 v5, v5, s15")
e("v_lshlrev_b32 v6, 4, v4")
e("v_add_u32 v5, v5, v6")
for c in range(5):
    e(f"buffer_load_dwordx4 v[{DD+4*c}:{DD+4*c+3}], v6, s[20:23], 0 offen offset:{c*256}")
for c in range(5):
    e(f"buffer_load_dwordx4 v[{DD+20+4*c}:{DD+20+4*c+3}], v6, s[24:27], 0 offen offset:{c*256}")
for j in range(4):
    if j > 0:
        e(f"v_add_u32 v5, {4*1280}, v5")
    for c in range(5):
        r = XR + (j*5 + c)*4
        e(f"buffer_load_dwordx4 v[{r}:{r+3}], v5, s[16:19], 0 offen offset:{c*256}")
e("s_lshl_b32 s14, s38, 4")
e("v_add_u32 v7, s14, v3")
e(f"s_mov_b32 s15, {A_STRIDE}")
e("v_mul_lo_u32 v7, v7, s15")
e("v_add_u32 v7, v7, v6")
e("s_mov_b32 s44, 0xffff0000")
e("s_mov_b32 s45, 0x3f803f80")
e("s_mov_b32 s46, 0x3acccccd")
e("s_mov_b32 s47, 0x3727c5ac")
e("s_waitcnt vmcnt(20)")
for idx in range(20):
    e(f"v_lshlrev_b32 v{GU+2*idx}, 16, v{DD+idx}")
    e(f"v_and_b32 v{GU+2*idx+1}, s44, v{DD+idx}")
for idx in range(20):
    e(f"v_lshlrev_b32 v{BU+2*idx}, 16, v{DD+20+idx}")
    e(f"v_and_b32 v{BU+2*idx+1}, s44, v{DD+20+idx}")

def dpp_reduce(r):
    for sh in (8, 4, 2, 1):
        e("s_nop 1")
        e(f"v_add_f32_dpp v{r}, v{r}, v{r} row_ror:{sh} row_mask:0xf bank_mask:0xf")

for j in range(4):
    e(f"s_waitcnt vmcnt({15 - 5*j})")
    base = XR + j*20
    sm = TM
    e(f"v_mov_b32 v{sm}, 0")
    for idx in range(20):
        e(f"v_dot2c_f32_bf16 v{sm}, s45, v{base+idx}")
    dpp_reduce(sm)
    e(f"v_mul_f32 v{sm}, s46, v{sm}")
    sq = TM + 1
    e(f"v_mov_b32 v{sq}, 0")
    for idx in range(20):
        e(f"v_lshlrev_b32 v{DD+2*idx}, 16, v{base+idx}")
        e(f"v_and_b32 v{DD+2*idx+1}, s44, v{base+idx}")
        e(f"v_sub_f32 v{DD+2*idx}, v{DD+2*idx}, v{sm}")
        e(f"v_sub_f32 v{DD+2*idx+1}, v{DD+2*idx+1}, v{sm}")
        e(f"v_fmac_f32 v{sq}, v{DD+2*idx}, v{DD+2*idx}")
        e(f"v_fmac_f32 v{sq}, v{DD+2*idx+1}, v{DD+2*idx+1}")
    dpp_reduce(sq)
    e(f"v_mov_b32 v{TM+2}, s47")
    e(f"v_fmac_f32 v{TM+2}, s46, v{sq}")
    e(f"v_rsq_f32 v{TM+2}, v{TM+2}")
    e("s_nop 0")
    for c in range(5):
        for h in range(4):
            idx = c*4 + h
            e(f"v_mul_f32 v{DD+2*idx}, v{DD+2*idx}, v{TM+2}")
            e(f"v_mul_f32 v{DD+2*idx+1}, v{DD+2*idx+1}, v{TM+2}")
            e(f"v_fma_f32 v{DD+2*idx}, v{DD+2*idx}, v{GU+2*idx}, v{BU+2*idx}")
            e(f"v_fma_f32 v{DD+2*idx+1}, v{DD+2*idx+1}, v{GU+2*idx+1}, v{BU+2*idx+1}")
            e(f"v_cvt_pk_bf16_f32 v{TM+4+h}, v{DD+2*idx}, v{DD+2*idx+1}")
        e(f"ds_write_b128 v7, v[{TM+4}:{TM+7}] offset:{j*4*A_STRIDE + c*256}")
        e("s_nop 1")

e("s_waitcnt lgkmcnt(0)")
e("s_barrier")

e("v_lshrrev_b32 v3, 4, v1")
e("v_lshlrev_b32 v3, 2, v3")
e("v_and_b32 v4, 15, v1")
e("v_lshrrev_b32 v5, 2, v4")
e("v_add_u32 v3, v3, v5")
e("v_mul_u32_u24 v3, 160, v3")
e("v_and_b32 v5, 3, v4")
e("v_lshlrev_b32 v5, 3, v5")
e("v_add_u32 v3, v3, v5")
e(f"v_add_u32 v{VTR}, s42, v3")
e(f"v_mul_u32_u24 v3, {A_STRIDE}, v4")
e("v_lshrrev_b32 v5, 4, v1")
e("v_lshlrev_b32 v5, 4, v5")
e(f"v_add_u32 v{VXA}, v3, v5")
for a in range(80):
    e(f"v_accvgpr_write_b32 a{a}, 0")

def frag_reads(t):
    s = t % 2
    slot = t % NSLOT
    for tt in range(5):
        r = WF + s*20 + tt*4
        for h in range(2):
            e(f"ds_read_b64_tr_b16 v[{r+2*h}:{r+2*h+1}], v{VTR} offset:{slot*B_SLOT + h*16*160 + tt*32}")
    for mt in range(4):
        r = XF + s*16 + mt*4
        e(f"ds_read_b128 v[{r}:{r+3}], v{VXA} offset:{mt*16*A_STRIDE + t*64}")

e("s_waitcnt vmcnt(5)")
frag_reads(0)
for t in range(NSTEP):
    s = t % 2
    if t + 2 < NSTEP:
        dma_stage(t + 2)
    if t + 1 < NSTEP:
        e(f"s_waitcnt vmcnt({5 if t + 2 < NSTEP else 0})")
        frag_reads(t + 1)
        e("s_waitcnt lgkmcnt(14)")
    else:
        e("s_waitcnt lgkmcnt(0)")
    for tt in range(5):
        for mt in range(4):
            a = (tt*4 + mt)*4
            wr = WF + s*20 + tt*4
            xr = XF + s*16 + mt*4
            e(f"v_mfma_f32_16x16x32_bf16 a[{a}:{a+3}], v[{wr}:{wr+3}], v[{xr}:{xr+3}], a[{a}:{a+3}]")

e("v_and_b32 v4, 15, v1")
e("v_add_u32 v4, s36, v4")
e("s_mov_b32 s15, 1280")
e("v_mul_lo_u32 v4, v4, s15")
e("v_lshrrev_b32 v5, 4, v1")
e("v_lshlrev_b32 v5, 3, v5")
e("v_add_u32 v4, v4, v5")
e("s_lshl_b32 s15, s39, 1")
e(f"v_add_u32 v{VOUT}, s15, v4")
e("s_nop 7")
e("s_nop 7")
n = 0
for mt in range(4):
    for tt in range(5):
        a = (tt*4 + mt)*4
        r = 100 + (n % 8)*8
        n += 1
        for k in range(4):
            e(f"v_accvgpr_read_b32 v{r+k}, a{a+k}")
        e(f"v_cvt_pk_bf16_f32 v{r+4}, v{r}, v{r+1}")
        e(f"v_cvt_pk_bf16_f32 v{r+5}, v{r+2}, v{r+3}")
        off = mt*16*1280 + tt*32
        if off < 4096:
            e(f"buffer_store_dwordx2 v[{r+4}:{r+5}], v{VOUT}, s[32:35], 0 offen offset:{off}")
        else:
            e(f"s_mov_b32 s14, {mt*16*1280}")
            e(f"buffer_store_dwordx2 v[{r+4}:{r+5}], v{VOUT}, s[32:35], s14 offen offset:{tt*32}")
out.append("L_end:")

hdr = open("standalone__layernorm_linear__sampling.s.ref").read().split("\n")
res = []
for ln in hdr:
    if ln.startswith("; @launch"):
        res.append(f"; @launch grid=(256,1,1) block=(256,1,1) lds={LDS_BYTES}")
        continue
    res.append(ln)
    if ln.startswith("standalone__layernorm_linear__sampling_kernel:"):
        break
txt = "\n".join(res) + "\n" + "\n".join(out) + "\n"
txt += """s_endpgm
.section .rodata,"a"
.p2align 6
.amdhsa_kernel standalone__layernorm_linear__sampling_kernel
  .amdhsa_next_free_vgpr 336
  .amdhsa_next_free_sgpr 102
  .amdhsa_accum_offset 256
  .amdhsa_group_segment_fixed_size 0
  .amdhsa_kernarg_size 56
  .amdhsa_user_sgpr_count 2
  .amdhsa_user_sgpr_kernarg_segment_ptr 1
  .amdhsa_system_sgpr_workgroup_id_x 1
.end_amdhsa_kernel
"""
dst = sys.argv[1] if len(sys.argv) > 1 else "standalone__layernorm_linear__sampling.s"
open(dst, "w").write(txt)
```

```python
import sys

A_STRIDE = 1296
A_BYTES = 64 * A_STRIDE
NSLOT = 3
B_SLOT = 5120
LDS_BYTES = A_BYTES + 4 * NSLOT * B_SLOT
NSTEP = 20

out = []
def e(s):
    out.append("    " + s)

XR = 20
GU = 100
BU = 140
DD = 180
TM = 220
VW = 240
VTR = 245
VXA = 246
VOUT = 247
WF = 20
XF = 60

e("s_cmp_ge_u32 s2, 256")
e("s_cbranch_scc1 L_end")
e("s_load_dwordx4 s[4:7], s[0:1], 0")
e("s_load_dwordx4 s[8:11], s[0:1], 16")
e("s_load_dwordx2 s[12:13], s[0:1], 32")
e("v_lshrrev_b32 v2, 6, v0")
e("v_and_b32 v1, 63, v0")
e("s_lshr_b32 s3, s2, 4")
e("s_lshl_b32 s3, s3, 3")
e("s_and_b32 s14, s2, 7")
e("s_add_u32 s3, s3, s14")
e("s_lshl_b32 s36, s3, 6")
e("s_lshr_b32 s14, s2, 3")
e("s_and_b32 s14, s14, 1")
e("s_mul_i32 s37, s14, 320")
e("v_readfirstlane_b32 s38, v2")
e("s_nop 3")
e("s_mul_i32 s39, s38, 80")
e("s_add_u32 s39, s39, s37")
e("s_waitcnt lgkmcnt(0)")
def srd(d, p, n):
    e(f"s_mov_b32 s{d}, s{p}")
    e(f"s_and_b32 s{d+1}, s{p+1}, 0xffff")
    e(f"s_mov_b32 s{d+2}, {n}")
    e(f"s_mov_b32 s{d+3}, 0x20000")
srd(16, 4, 10485760)
srd(20, 6, 1280)
srd(24, 8, 1280)
srd(28, 10, 819200)
srd(32, 12, 10485760)

e("s_mov_b32 s14, 6554")
for q in range(5):
    e(f"v_add_u32 v3, {q*64}, v1")
    e("v_mul_lo_u32 v4, v3, s14")
    e("v_lshrrev_b32 v4, 16, v4")
    e("v_mul_u32_u24 v5, 10, v4")
    e("v_sub_u32 v5, v3, v5")
    e("v_and_b32 v6, 15, v4")
    e("v_lshrrev_b32 v6, 2, v6")
    e("v_lshlrev_b32 v6, 3, v6")
    e("v_and_b32 v7, 3, v4")
    e("v_add_u32 v6, v6, v7")
    e("v_lshrrev_b32 v7, 4, v4")
    e("v_lshlrev_b32 v7, 2, v7")
    e("v_add_u32 v6, v6, v7")
    e("v_mul_u32_u24 v6, 0x500, v6")
    e("v_lshlrev_b32 v5, 4, v5")
    e("v_add_u32 v6, v6, v5")
    e("s_lshl_b32 s15, s39, 1")
    e(f"v_add_u32 v{VW+q}, s15, v6")
e(f"s_mul_i32 s42, s38, {NSLOT*B_SLOT}")
e(f"s_add_u32 s42, s42, {A_BYTES}")

def dma_stage(t):
    slot = t % NSLOT
    e(f"s_mov_b32 s41, {t*40960}")
    for q in range(5):
        e(f"s_add_u32 s43, s42, {slot*B_SLOT + q*1024}")
        e("s_mov_b32 m0, s43")
        e("s_nop 0")
        e(f"buffer_load_dwordx4 v{VW+q}, s[28:31], s41 offen lds")

dma_stage(0)
dma_stage(1)

e("v_lshrrev_b32 v3, 4, v1")
e("v_and_b32 v4, 15, v1")
e("s_lshl_b32 s14, s38, 4")
e("s_add_u32 s14, s14, s36")
e("v_add_u32 v5, s14, v3")
e("s_mov_b32 s15, 1280")
e("v_mul_lo_u32 v5, v5, s15")
e("v_lshlrev_b32 v6, 4, v4")
e("v_add_u32 v5, v5, v6")
for c in range(5):
    e(f"buffer_load_dwordx4 v[{DD+4*c}:{DD+4*c+3}], v6, s[20:23], 0 offen offset:{c*256}")
for c in range(5):
    e(f"buffer_load_dwordx4 v[{DD+20+4*c}:{DD+20+4*c+3}], v6, s[24:27], 0 offen offset:{c*256}")
for j in range(4):
    if j > 0:
        e(f"v_add_u32 v5, {4*1280}, v5")
    for c in range(5):
        r = XR + (j*5 + c)*4
        e(f"buffer_load_dwordx4 v[{r}:{r+3}], v5, s[16:19], 0 offen offset:{c*256}")
e("s_lshl_b32 s14, s38, 4")
e("v_add_u32 v7, s14, v3")
e(f"s_mov_b32 s15, {A_STRIDE}")
e("v_mul_lo_u32 v7, v7, s15")
e("v_add_u32 v7, v7, v6")
e("s_mov_b32 s44, 0xffff0000")
e("s_mov_b32 s45, 0x3f803f80")
e("s_mov_b32 s46, 0x3acccccd")
e("s_mov_b32 s47, 0x3727c5ac")
e("s_waitcnt vmcnt(20)")
for idx in range(20):
    e(f"v_lshlrev_b32 v{GU+2*idx}, 16, v{DD+idx}")
    e(f"v_and_b32 v{GU+2*idx+1}, s44, v{DD+idx}")
for idx in range(20):
    e(f"v_lshlrev_b32 v{BU+2*idx}, 16, v{DD+20+idx}")
    e(f"v_and_b32 v{BU+2*idx+1}, s44, v{DD+20+idx}")

def dpp_reduce(r):
    for sh in (8, 4, 2, 1):
        e("s_nop 1")
        e(f"v_add_f32_dpp v{r}, v{r}, v{r} row_ror:{sh} row_mask:0xf bank_mask:0xf")

for j in range(4):
    e(f"s_waitcnt vmcnt({15 - 5*j})")
    base = XR + j*20
    sm = TM
    e(f"v_mov_b32 v{sm}, 0")
    for idx in range(20):
        e(f"v_dot2c_f32_bf16 v{sm}, s45, v{base+idx}")
    dpp_reduce(sm)
    e(f"v_mul_f32 v{sm}, s46, v{sm}")
    sq = TM + 1
    e(f"v_mov_b32 v{sq}, 0")
    for idx in range(20):
        e(f"v_lshlrev_b32 v{DD+2*idx}, 16, v{base+idx}")
        e(f"v_and_b32 v{DD+2*idx+1}, s44, v{base+idx}")
        e(f"v_sub_f32 v{DD+2*idx}, v{DD+2*idx}, v{sm}")
        e(f"v_sub_f32 v{DD+2*idx+1}, v{DD+2*idx+1}, v{sm}")
        e(f"v_fmac_f32 v{sq}, v{DD+2*idx}, v{DD+2*idx}")
        e(f"v_fmac_f32 v{sq}, v{DD+2*idx+1}, v{DD+2*idx+1}")
    dpp_reduce(sq)
    e(f"v_mov_b32 v{TM+2}, s47")
    e(f"v_fmac_f32 v{TM+2}, s46, v{sq}")
    e(f"v_rsq_f32 v{TM+2}, v{TM+2}")
    e("s_nop 0")
    for c in range(5):
        for h in range(4):
            idx = c*4 + h
            e(f"v_mul_f32 v{DD+2*idx}, v{DD+2*idx}, v{TM+2}")
            e(f"v_mul_f32 v{DD+2*idx+1}, v{DD+2*idx+1}, v{TM+2}")
            e(f"v_fma_f32 v{DD+2*idx}, v{DD+2*idx}, v{GU+2*idx}, v{BU+2*idx}")
            e(f"v_fma_f32 v{DD+2*idx+1}, v{DD+2*idx+1}, v{GU+2*idx+1}, v{BU+2*idx+1}")
            e(f"v_cvt_pk_bf16_f32 v{TM+4+h}, v{DD+2*idx}, v{DD+2*idx+1}")
        e(f"ds_write_b128 v7, v[{TM+4}:{TM+7}] offset:{j*4*A_STRIDE + c*256}")
        e("s_nop 1")

e("s_waitcnt lgkmcnt(0)")
e("s_barrier")

e("v_lshrrev_b32 v3, 4, v1")
e("v_lshlrev_b32 v3, 2, v3")
e("v_and_b32 v4, 15, v1")
e("v_lshrrev_b32 v5, 2, v4")
e("v_add_u32 v3, v3, v5")
e("v_mul_u32_u24 v3, 160, v3")
e("v_and_b32 v5, 3, v4")
e("v_lshlrev_b32 v5, 3, v5")
e("v_add_u32 v3, v3, v5")
e(f"v_add_u32 v{VTR}, s42, v3")
e(f"v_mul_u32_u24 v3, {A_STRIDE}, v4")
e("v_lshrrev_b32 v5, 4, v1")
e("v_lshlrev_b32 v5, 4, v5")
e(f"v_add_u32 v{VXA}, v3, v5")
for a in range(80):
    e(f"v_accvgpr_write_b32 a{a}, 0")

def frag_reads(t):
    s = t % 2
    slot = t % NSLOT
    for tt in range(5):
        r = WF + s*20 + tt*4
        for h in range(2):
            e(f"ds_read_b64_tr_b16 v[{r+2*h}:{r+2*h+1}], v{VTR} offset:{slot*B_SLOT + h*16*160 + tt*32}")
    for mt in range(4):
        r = XF + s*16 + mt*4
        e(f"ds_read_b128 v[{r}:{r+3}], v{VXA} offset:{mt*16*A_STRIDE + t*64}")

e("s_waitcnt vmcnt(5)")
frag_reads(0)
def capture(fn, *a):
    global out
    save = out
    out = []
    fn(*a)
    got = out
    out = save
    return got
for t in range(NSTEP):
    s = t % 2
    e("s_waitcnt lgkmcnt(0)")
    fill = []
    if t + 2 < NSTEP:
        d = capture(dma_stage, t + 2)
        fill.append([d[0]] + d[1:5])
        for q in range(1, 5):
            fill.append(d[1+4*q:5+4*q])
    else:
        fill += [[] for _ in range(5)]
    if t + 1 < NSTEP:
        rd = capture(frag_reads, t + 1)
        fill.append([f"    s_waitcnt vmcnt({5 if t + 2 < NSTEP else 0})", rd[0]])
        for r in rd[1:]:
            fill.append([r])
    k = 0
    for tt in range(5):
        for mt in range(4):
            a = (tt*4 + mt)*4
            wr = WF + s*20 + tt*4
            xr = XF + s*16 + mt*4
            e(f"v_mfma_f32_16x16x32_bf16 a[{a}:{a+3}], v[{wr}:{wr+3}], v[{xr}:{xr+3}], a[{a}:{a+3}]")
            if k < len(fill):
                out.extend(fill[k])
            k += 1

e("v_and_b32 v4, 15, v1")
e("v_mul_u32_u24 v4, 176, v4")
e("v_lshrrev_b32 v5, 4, v1")
e("v_lshlrev_b32 v5, 3, v5")
e("v_add3_u32 v8, v4, v5, s42")
e("s_mov_b32 s14, 6554")
e("s_lshl_b32 s15, s39, 1")
e("s_mul_i32 s48, s36, 1280")
e("s_add_u32 s48, s48, s15")
for q in range(10):
    e(f"v_add_u32 v3, {q*64}, v1")
    e("v_mul_lo_u32 v4, v3, s14")
    e("v_lshrrev_b32 v4, 16, v4")
    e("v_mul_u32_u24 v5, 10, v4")
    e("v_sub_u32 v5, v3, v5")
    e("v_lshlrev_b32 v5, 4, v5")
    e("v_mul_u32_u24 v6, 176, v4")
    e(f"v_add3_u32 v{200+q}, v6, v5, s42")
    e("v_mul_u32_u24 v6, 0x500, v4")
    e(f"v_add_u32 v{210+q}, v6, v5")
e("s_nop 7")
n = 0
for mt in range(4):
    for tt in range(5):
        a = (tt*4 + mt)*4
        r = 100 + (n % 8)*8
        n += 1
        for k in range(4):
            e(f"v_accvgpr_read_b32 v{r+k}, a{a+k}")
        e(f"v_cvt_pk_bf16_f32 v{r+4}, v{r}, v{r+1}")
        e(f"v_cvt_pk_bf16_f32 v{r+5}, v{r+2}, v{r+3}")
        e(f"ds_write_b64 v8, v[{r+4}:{r+5}] offset:{mt*16*176 + tt*32}")
e("s_waitcnt lgkmcnt(0)")
for q in range(10):
    e(f"ds_read_b128 v[{20+4*q}:{23+4*q}], v{200+q}")
for q in range(10):
    e(f"s_waitcnt lgkmcnt({9-q})")
    e(f"buffer_store_dwordx4 v[{20+4*q}:{23+4*q}], v{210+q}, s[32:35], s48 offen")
out.append("L_end:")

hdr = open("standalone__layernorm_linear__sampling.s.ref").read().split("\n")
res = []
for ln in hdr:
    if ln.startswith("; @launch"):
        res.append(f"; @launch grid=(256,1,1) block=(256,1,1) lds={LDS_BYTES}")
        continue
    res.append(ln)
    if ln.startswith("standalone__layernorm_linear__sampling_kernel:"):
        break
txt = "\n".join(res) + "\n" + "\n".join(out) + "\n"
txt += """s_endpgm
.section .rodata,"a"
.p2align 6
.amdhsa_kernel standalone__layernorm_linear__sampling_kernel
  .amdhsa_next_free_vgpr 336
  .amdhsa_next_free_sgpr 102
  .amdhsa_accum_offset 256
  .amdhsa_group_segment_fixed_size 0
  .amdhsa_kernarg_size 56
  .amdhsa_user_sgpr_count 2
  .amdhsa_user_sgpr_kernarg_segment_ptr 1
  .amdhsa_system_sgpr_workgroup_id_x 1
.end_amdhsa_kernel
"""
dst = sys.argv[1] if len(sys.argv) > 1 else "standalone__layernorm_linear__sampling.s"
open(dst, "w").write(txt)
```
